```python
import torch

def _softmax(x, axis=-1):
    return torch.softmax(x, dim=axis)
def _gelu(x):
    return torch.nn.functional.gelu(x, approximate="tanh")
def _silu(x):
    return torch.nn.functional.silu(x)
def _sigmoid(x):
    return torch.sigmoid(x)
def _layernorm(x, axis=-1, eps=1e-5):
    m = x.mean(dim=axis, keepdim=True)
    v = x.var(dim=axis, keepdim=True, unbiased=False)
    return (x - m) / torch.sqrt(v + eps)
def _scatter_add(tgt, idx, src, axis=0):
    return tgt.clone().index_add_(axis, idx, src)
def _segment_sum(src, seg, n):
    out = torch.zeros((n,) + src.shape[1:], dtype=src.dtype)
    return out.index_add_(0, seg, src)
def _pad(x, pw):
    flat = tuple(v for pair in reversed(pw) for v in pair)
    return torch.nn.functional.pad(x, flat)

kernel_name = 'recurrent_scan__gqa_block_cached__glu_gated_geglu__decode'

def setup_inputs():

    _w = (lambda a: (lambda t: t.to(torch.bfloat16) if t.is_floating_point() else t)(torch.as_tensor(a)))
    def _A_setup():
        B, Sq, D = 1, 1, 512
        Hq, Hkv, Sk, Dh = 32, 8, 65536, 128
        assert Hq % Hkv == 0, (Hq, Hkv)
        return {
            "x": _w((lambda *s: torch.randn(*s, dtype=torch.bfloat16) * 0.4)(B, Sq, D)),
            "k_cache": _w((lambda *s: torch.randn(*s, dtype=torch.bfloat16) * 1.6)(B, Hkv, Sk, Dh)),
            "v_cache": _w((lambda *s: torch.randn(*s, dtype=torch.bfloat16) * 1.6)(B, Hkv, Sk, Dh)),
            "wq": _w((lambda *s: torch.randn(*s, dtype=torch.bfloat16) * 1.6)(D, Hq * Dh) * (D ** -0.5)),
            "wo": _w((lambda *s: torch.randn(*s, dtype=torch.bfloat16) * 1.6)(Hq * Dh, D) * ((Hq * Dh) ** -0.5)),
        }
    _A_in = _A_setup()

    def _B_setup():
        B, S, Dm, Df = 1, 1, 512, 1792
        return {
            "x": _w((lambda *s: torch.randn(*s, dtype=torch.bfloat16) * 0.4)(B, S, Dm)),
            "w_gate": _w((lambda *s: torch.randn(*s, dtype=torch.bfloat16) * 1.6)(Dm, Df) * (Dm ** -0.5)),
            "w_up": _w((lambda *s: torch.randn(*s, dtype=torch.bfloat16) * 1.6)(Dm, Df) * (Dm ** -0.5)),
            "w_down": _w((lambda *s: torch.randn(*s, dtype=torch.bfloat16) * 1.6)(Df, Dm) * (Df ** -0.5)),
        }
    _B_in = _B_setup()

    return {
        "A_x": _A_in["x"],
        "A_k_cache": _A_in["k_cache"],
        "A_v_cache": _A_in["v_cache"],
        "A_wq": _A_in["wq"],
        "A_wo": _A_in["wo"],
        "B_x": _B_in["x"],
        "B_w_gate": _B_in["w_gate"],
        "B_w_up": _B_in["w_up"],
        "B_w_down": _B_in["w_down"],
    }

def reference(A_x, A_k_cache, A_v_cache, A_wq, A_wo, B_x, B_w_gate, B_w_up, B_w_down):
    def _A_ref(x, k_cache, v_cache, wq, wo):
        B, Sq, D = x.shape
        Hq, Dh = 32, 128
        Hkv = k_cache.shape[1]
        rep = Hq // Hkv
        q = (lambda x, *d: x.permute(*d))((x @ wq).reshape(B, Sq, Hq, Dh), 0, 2, 1, 3)
        k = (lambda x, n, axis: torch.repeat_interleave(x, n, dim=axis))(k_cache, rep, axis=1)
        v = (lambda x, n, axis: torch.repeat_interleave(x, n, dim=axis))(v_cache, rep, axis=1)
        scores = torch.einsum("bhqd,bhkd->bhqk", q, k) * (Dh ** -0.5)
        p = _softmax(scores, axis=-1)
        o = torch.einsum("bhqk,bhkd->bhqd", p, v)
        return (lambda x, *d: x.permute(*d))(o, 0, 2, 1, 3).reshape(B, Sq, Hq * Dh) @ wo

    def _B_ref(x, w_gate, w_up, w_down):
        g = torch.einsum("bsd,df->bsf", x, w_gate)
        u = torch.einsum("bsd,df->bsf", x, w_up)
        h = _gelu(g) * u
        return torch.einsum("bsf,fd->bsd", h, w_down)

    x = A_x
    xn = _layernorm(x, axis=-1)
    s = _A_ref(xn, A_k_cache, A_v_cache, A_wq, A_wo)
    g = _silu(_B_ref(xn, B_w_gate, B_w_up, B_w_down))
    return x + s * g
```

```python
import math, sys

NAME = 'recurrent_scan__gqa_block_cached__glu_gated_geglu__decode'

WS_NONCE = 0
WS_QG = 0x1000
WS_ML = 0x8000
WS_P1 = 0x10000
WS_P2 = 0x200000
WS_PF = 0x300000
WS_ST = 0x400000

L_RED = 0
L_QF = 1024
L_MLW = 2048
L_OA = 2432
L_R3 = 2560
L_D = 4096
L_WO = 20480
LDS_BYTES = 36864

class G:
    def __init__(self):
        self.L = []
    def A(self, s):
        self.L.append(s)
    def lab(self, s):
        self.L.append(s + ':')
    def text(self):
        return "\n".join(("    " + x) if not x.endswith(":") else x for x in self.L)

def f32bits(x):
    import struct
    return '0x%08x' % struct.unpack('<I', struct.pack('<f', x))[0]

DPPM = 'row_mask:0xf bank_mask:0xf'

def gen(pol='nt', wpol='nt', stamps=False, spin=200000, sleep=1):
    g = G(); A = g.A
    nst = [0]
    def stamp(name):
        if stamps:
            i = nst[0]; nst[0] += 1
            assert 70 + 2 * i + 1 < 100
            A(f"s_memrealtime s[{70+2*i}:{71+2*i}]")

    def rnd(dst, src):
        A(f"v_cvt_pk_bf16_f32 {dst}, {src}, {src}")
        A(f"v_and_b32 {dst}, 0xffff0000, {dst}")

    def xlane(op, v, t, which):
        A(f"v_mov_b32 {t}, {v}")
        A("s_nop 1")
        A(f"v_permlane{which}_swap_b32 {t}, {v}")
        A(f"{op} {v}, {t}, {v}")

    def allreduce_add(v, t):
        for r in (8, 4, 2, 1):
            A("s_nop 1")
            A(f"v_add_f32_dpp {v}, {v}, {v} row_ror:{r} {DPPM}")
        xlane("v_add_f32", v, t, 16)
        xlane("v_add_f32", v, t, 32)

    stamp('start')
    A("s_load_dwordx16 s[4:19], s[0:1], 0")
    A("s_load_dwordx8 s[20:27], s[0:1], 64")
    A("s_cmp_ge_u32 s2, 256")
    A("s_cbranch_scc1 L_end")
    A("v_and_b32 v1, 63, v0")
    A("v_lshrrev_b32 v50, 6, v0")
    A("s_and_b32 s30, s2, 7")
    A("s_lshr_b32 s31, s2, 3")
    A("v_readfirstlane_b32 s29, v50")
    A("v_lshlrev_b32 v3, 4, v1")
    A("v_lshrrev_b32 v50, 4, v1")
    A("v_bfe_u32 v51, v1, 2, 2")
    A("v_and_b32 v52, 3, v1")
    A("v_lshlrev_b32 v2, 6, v50")
    A("v_lshl_add_u32 v2, v51, 8, v2")
    A("v_lshl_add_u32 v2, v52, 4, v2")
    A("s_lshl_b32 s36, s30, 24")
    A("s_lshl_b32 s37, s31, 19")
    A("s_lshl_b32 s38, s29, 16")
    A("s_add_u32 s36, s36, s37")
    A("s_add_u32 s36, s36, s38")
    A("s_add_u32 s36, s36, 4096")
    A("s_lshl_b32 s39, s29, 6")
    A("v_lshrrev_b32 v53, 1, v1")
    A("v_add_u32 v53, s39, v53")
    A("v_and_b32 v52, 1, v1")
    A("v_lshlrev_b32 v54, 1, v53")
    A("s_lshl_b32 s37, s30, 10")
    A("s_lshl_b32 s38, s31, 5")
    A("s_add_u32 s37, s37, s38")
    A("v_lshlrev_b32 v55, 13, v53")
    A("v_lshl_add_u32 v55, v52, 4, v55")
    A("v_add_u32 v55, s37, v55")
    A("v_add_u32 v49, 0x40000, v55")
    A("s_min_u32 s40, s31, 27")
    A("s_mul_i32 s41, s30, 28")
    A("s_add_u32 s40, s40, s41")
    A("s_lshl_b32 s41, s40, 4")
    A("v_mul_u32_u24 v48, 3584, v53")
    A("v_add_u32 v48, s41, v48")
    A("v_cmp_eq_u32 vcc, 1, v52")
    A("s_lshl_b32 s42, s30, 9")
    A("s_bfe_u32 s43, s31, 0x20001")
    A("s_lshl_b32 s43, s43, 7")
    A("s_add_u32 s42, s42, s43")
    A("s_lshr_b32 s43, s31, 3")
    A("s_lshl_b32 s43, s43, 5")
    A("s_add_u32 s42, s42, s43")
    A("s_and_b32 s43, s29, 1")
    A("s_lshl_b32 s43, s43, 4")
    A("s_add_u32 s42, s42, s43")
    A("s_bfe_u32 s43, s29, 0x10001")
    A("s_lshl_b32 s43, s43, 2")
    A("s_add_u32 s42, s42, s43")
    A("s_and_b32 s43, s31, 1")
    A("s_lshl_b32 s43, s43, 1")
    A("s_add_u32 s42, s42, s43")
    A("s_lshr_b32 s43, s29, 2")
    A("s_add_u32 s42, s42, s43")
    A("s_lshl_b32 s42, s42, 10")
    A("s_lshl_b32 s43, s40, 3")
    A("s_add_u32 s43, s43, s29")
    A("s_lshl_b32 s43, s43, 10")
    A("s_lshl_b32 s44, s29, 11")
    A(f"s_add_u32 s44, s44, {L_WO}")
    A("s_waitcnt lgkmcnt(0)")
    A("s_load_dword s28, s[26:27], 0")
    A("global_load_dwordx4 v[56:59], v3, s[4:5]")
    A("global_load_ushort v60, v54, s[4:5]")
    A("global_load_ushort v61, v54, s[4:5] offset:64")
    A(f"global_load_dwordx4 v[224:227], v55, s[10:11] {wpol}")
    A(f"global_load_dwordx4 v[228:231], v49, s[10:11] {wpol}")
    A("v_mov_b32 v62, s16")
    A("v_mov_b32 v63, s17")
    A("v_mov_b32 v50, s18")
    A("v_mov_b32 v51, s19")
    A("v_cndmask_b32 v62, v62, v50, vcc")
    A("v_cndmask_b32 v63, v63, v51, vcc")
    A("v_add_co_u32 v62, vcc, v62, v48")
    A("s_nop 1")
    A("v_addc_co_u32 v63, vcc, 0, v63, vcc")
    A("v_add_co_u32 v50, vcc, 0x1c000, v62")
    A("s_nop 1")
    A("v_addc_co_u32 v51, vcc, 0, v63, vcc")
    A(f"global_load_dwordx4 v[232:235], v[62:63], off {wpol}")
    A(f"global_load_dwordx4 v[236:239], v[50:51], off {wpol}")
    A("s_add_u32 s46, s20, s43")
    A("s_addc_u32 s47, s21, 0")
    A(f"global_load_dwordx4 v[240:243], v3, s[46:47] {wpol}")
    A("s_add_u32 s46, s12, s42")
    A("s_addc_u32 s47, s13, 0")
    A("s_mov_b32 m0, s44")
    A("s_add_u32 s48, s46, 8192")
    A("s_addc_u32 s49, s47, 0")
    A(f"global_load_lds_dwordx4 v3, s[46:47] {wpol}")
    A("s_add_u32 m0, s44, 1024")
    A("s_nop 0")
    A(f"global_load_lds_dwordx4 v3, s[48:49] {wpol}")
    A("s_add_u32 s32, s6, s36")
    A("s_addc_u32 s33, s7, 0")
    A("s_add_u32 s34, s8, s36")
    A("s_addc_u32 s35, s9, 0")

    KB = [96, 160]; VB = [128, 192]
    def loadK(st):
        for i in range(8):
            r = KB[st] + 4 * i
            A(f"global_load_dwordx4 v[{r}:{r+3}], v2, s[32:33] offset:{i*1024-4096} {pol}")
        A("s_add_u32 s32, s32, 8192")
        A("s_addc_u32 s33, s33, 0")
    def loadV(st):
        for i in range(8):
            r = VB[st] + 4 * i
            A(f"global_load_dwordx4 v[{r}:{r+3}], v3, s[34:35] offset:{i*1024-4096} {pol}")
        A("s_add_u32 s34, s34, 8192")
        A("s_addc_u32 s35, s35, 0")

    A("s_cmp_eq_u32 s29, 0")
    A("s_cbranch_scc1 L_w0_noprefetch")
    loadK(0); loadV(0); loadK(1); loadV(1)
    A("s_branch L_pre_done")
    g.lab("L_w0_noprefetch")
    A("s_waitcnt vmcnt(0)")
    g.lab("L_pre_done")
    stamp('issued')

    A("s_waitcnt vmcnt(41) lgkmcnt(0)")
    A("s_add_u32 s28, s28, 1")
    for i in range(4):
        A(f"v_lshlrev_b32 v{80+2*i}, 16, v{56+i}")
        A(f"v_and_b32 v{81+2*i}, 0xffff0000, v{56+i}")
    A("v_add_f32 v88, v80, v81")
    A("v_add_f32 v89, v82, v83")
    A("v_add_f32 v90, v84, v85")
    A("v_add_f32 v91, v86, v87")
    A("v_add_f32 v88, v88, v89")
    A("v_add_f32 v90, v90, v91")
    A("v_add_f32 v88, v88, v90")
    allreduce_add("v88", "v89")
    A(f"v_mul_f32 v88, {f32bits(1/512)}, v88")
    for i in range(8):
        A(f"v_sub_f32 v{80+i}, v{80+i}, v88")
    A("v_mul_f32 v90, v80, v80")
    for i in range(1, 8):
        A(f"v_fmac_f32 v90, v{80+i}, v{80+i}")
    allreduce_add("v90", "v89")
    A(f"v_mul_f32 v90, {f32bits(1/512)}, v90")
    rnd("v88", "v88")
    rnd("v90", "v90")
    A(f"v_add_f32 v90, {f32bits(1e-5)}, v90")
    rnd("v90", "v90")
    A("v_sqrt_f32 v90, v90")
    A("s_nop 0")
    rnd("v90", "v90")
    A("v_rcp_f32 v90, v90")
    A("s_waitcnt vmcnt(39)")
    A("v_lshlrev_b32 v60, 16, v60")
    A("v_lshlrev_b32 v61, 16, v61")
    A("v_sub_f32 v60, v60, v88")
    A("v_sub_f32 v61, v61, v88")
    rnd("v60", "v60"); rnd("v61", "v61")
    A("v_mul_f32 v60, v60, v90")
    A("v_mul_f32 v61, v61, v90")
    rnd("v60", "v60"); rnd("v61", "v61")
    stamp('ln')

    def prods(acc0, w0, w1):
        for i in range(4):
            A(f"v_lshlrev_b32 v80, 16, v{w0+i}")
            A(f"v_and_b32 v81, 0xffff0000, v{w0+i}")
            A(f"v_lshlrev_b32 v82, 16, v{w1+i}")
            A(f"v_and_b32 v83, 0xffff0000, v{w1+i}")
            A(f"v_mul_f32 v{acc0+2*i}, v60, v80")
            A(f"v_mul_f32 v{acc0+2*i+1}, v60, v81")
            A(f"v_fmac_f32 v{acc0+2*i}, v61, v82")
            A(f"v_fmac_f32 v{acc0+2*i+1}, v61, v83")
    A("s_waitcnt vmcnt(37)")
    prods(64, 224, 228)
    A("s_waitcnt vmcnt(35)")
    prods(72, 232, 236)
    A("s_nop 1")
    for i in range(8):
        A(f"v_permlane32_swap_b32 v{64+2*i}, v{65+2*i}")
    for i in range(8):
        A(f"v_add_f32 v{64+2*i}, v{64+2*i}, v{65+2*i}")
    A("s_nop 1")
    for i in range(4):
        A(f"v_permlane16_swap_b32 v{64+4*i}, v{66+4*i}")
    for i in range(4):
        A(f"v_add_f32 v{64+4*i}, v{64+4*i}, v{66+4*i}")
    for r in (8, 4, 2):
        A("s_nop 1")
        for i in range(4):
            A(f"v_add_f32_dpp v{64+4*i}, v{64+4*i}, v{64+4*i} row_ror:{r} {DPPM}")
    A("v_lshrrev_b32 v80, 4, v1")
    A("v_and_b32 v81, 1, v80")
    A("v_lshrrev_b32 v80, 1, v80")
    A("v_lshl_add_u32 v80, v81, 1, v80")
    A("v_lshlrev_b32 v80, 2, v80")
    A("v_and_b32 v81, 1, v1")
    A("v_lshl_add_u32 v80, v81, 6, v80")
    A("s_lshl_b32 s41, s29, 7")
    A("v_add_u32 v80, s41, v80")
    A("v_and_b32 v81, 14, v1")
    A("v_cmp_eq_u32 vcc, 0, v81")
    A("s_and_saveexec_b64 s[42:43], vcc")
    for i in range(4):
        A(f"ds_write_b32 v80, v{64+4*i} offset:{L_RED + 16*i}")
    A("s_mov_b64 exec, s[42:43]")
    A("s_waitcnt lgkmcnt(0)")
    A("s_barrier")
    stamp('bar1')
    A(f"s_add_u32 s50, s26, {WS_QG}")
    A("s_addc_u32 s51, s27, 0")
    A("s_cmp_eq_u32 s29, 0")
    A("s_cbranch_scc0 L_noqpub")
    A("v_and_b32 v80, 7, v1")
    A("v_lshrrev_b32 v81, 2, v80")
    A("v_and_b32 v82, 3, v80")
    A("v_lshlrev_b32 v81, 6, v81")
    A("v_lshl_add_u32 v81, v82, 3, v81")
    for w in range(8):
        A(f"ds_read_b64 v[{64+2*w}:{65+2*w}], v81 offset:{L_RED + 128*w}")
    A("s_lshl_b32 s41, s30, 11")
    A("s_lshl_b32 s42, s31, 6")
    A("s_add_u32 s41, s41, s42")
    A("v_lshlrev_b32 v82, 3, v80")
    A("v_add_u32 v82, s41, v82")
    A("s_waitcnt lgkmcnt(0)")
    for w in range(1, 8):
        A(f"v_add_f32 v64, v64, v{64+2*w}")
        A(f"v_add_f32 v65, v65, v{65+2*w}")
    A("v_cvt_pk_bf16_f32 v64, v64, v65")
    A("v_mov_b32 v65, s28")
    A("s_mov_b64 exec, 0xff")
    A("global_store_dwordx2 v82, v[64:65], s[50:51] sc1")
    A("s_mov_b64 exec, -1")
    g.lab("L_noqpub")
    A("s_lshl_b32 s41, s29, 2")
    A(f"s_add_u32 s41, s41, {L_RED + 32}")
    A("v_mov_b32 v80, s41")
    for w in range(8):
        A(f"ds_read2_b32 v[{64+2*w}:{65+2*w}], v80 offset0:{32*w} offset1:{32*w+16}")
    A("s_waitcnt lgkmcnt(0)")
    for w in range(1, 8):
        A(f"v_add_f32 v64, v64, v{64+2*w}")
        A(f"v_add_f32 v65, v65, v{65+2*w}")
    rnd("v64", "v64"); rnd("v65", "v65")
    A("v_mul_f32 v66, v64, v64")
    A(f"v_mov_b32 v67, {f32bits(0.044715)}")
    A("v_fma_f32 v66, v66, v67, 1.0")
    A("v_mul_f32 v66, v66, v64")
    A(f"v_mul_f32 v66, {f32bits(-2*math.sqrt(2/math.pi)*math.log2(math.e))}, v66")
    A("v_exp_f32 v66, v66")
    A("s_nop 0")
    A("v_add_f32 v66, 1.0, v66")
    A("v_rcp_f32 v66, v66")
    A("s_nop 0")
    A("v_mul_f32 v66, v66, v64")
    rnd("v66", "v66")
    A("v_mul_f32 v66, v66, v65")
    rnd("v66", "v66")
    A("s_waitcnt vmcnt(34)")
    for i in range(4):
        A(f"v_lshlrev_b32 v{72+2*i}, 16, v{240+i}")
        A(f"v_and_b32 v{73+2*i}, 0xffff0000, v{240+i}")
    for i in range(8):
        A(f"v_mul_f32 v{72+i}, v66, v{72+i}")
    A("s_lshl_b32 s41, s29, 11")
    A("v_lshlrev_b32 v80, 5, v1")
    A("v_add_u32 v80, s41, v80")
    A(f"ds_write_b128 v80, v[72:75] offset:{L_D}")
    A(f"ds_write_b128 v80, v[76:79] offset:{L_D+16}")
    A("s_waitcnt lgkmcnt(0)")
    A("s_barrier")
    stamp('bar2')
    A("v_lshlrev_b32 v80, 2, v0")
    for w in range(8):
        A(f"ds_read_b32 v{64+w}, v80 offset:{L_D + 2048*w}")
    A("v_lshrrev_b32 v81, 4, v0")
    A("v_lshlrev_b32 v81, 15, v81")
    A("v_and_b32 v82, 15, v0")
    A("v_lshl_add_u32 v81, v82, 3, v81")
    A("s_lshl_b32 s41, s40, 7")
    A("v_add_u32 v81, s41, v81")
    A(f"s_add_u32 s52, s26, {WS_PF}")
    A("s_addc_u32 s53, s27, 0")
    A("s_waitcnt lgkmcnt(0)")
    for w in range(1, 8):
        A(f"v_add_f32 v64, v64, v{64+w}")
    A("v_mov_b32 v65, s28")
    A("s_cmp_lt_u32 s31, 28")
    A("s_cbranch_scc0 L_nofpub")
    A("global_store_dwordx2 v81, v[64:65], s[52:53] sc1")
    g.lab("L_nofpub")
    A("s_cmp_eq_u32 s29, 0")
    A("s_cbranch_scc0 L_noqget")
    A("v_bfe_u32 v80, v1, 2, 2")
    A("v_lshlrev_b32 v80, 9, v80")
    A("v_lshrrev_b32 v81, 4, v1")
    A("v_lshl_add_u32 v80, v81, 7, v80")
    A("v_and_b32 v81, 3, v1")
    A("v_lshl_add_u32 v80, v81, 5, v80")
    A("s_lshl_b32 s41, s30, 11")
    A("v_add_u32 v80, s41, v80")
    A(f"s_mov_b32 s45, {spin}")
    g.lab("L_qpoll")
    A("global_load_dwordx4 v[64:67], v80, s[50:51] sc1")
    A("global_load_dwordx4 v[68:71], v80, s[50:51] offset:16 sc1")
    A("s_waitcnt vmcnt(0)")
    A("v_xor_b32 v72, s28, v65")
    A("v_xor_b32 v73, s28, v67")
    A("v_xor_b32 v74, s28, v69")
    A("v_xor_b32 v75, s28, v71")
    A("v_or3_b32 v72, v72, v73, v74")
    A("v_or_b32 v72, v72, v75")
    A("v_cmp_ne_u32 vcc, 0, v72")
    A("s_cbranch_vccz L_qgot")
    A(f"s_sleep {sleep}")
    A("s_sub_u32 s45, s45, 1")
    A("s_cmp_lg_u32 s45, 0")
    A("s_cbranch_scc1 L_qpoll")
    g.lab("L_qgot")
    A("v_mov_b32 v65, v66")
    A("v_mov_b32 v66, v68")
    A("v_mov_b32 v67, v70")
    A(f"ds_write_b128 v3, v[64:67] offset:{L_QF}")
    stamp('qgot')
    loadK(0); loadV(0); loadK(1); loadV(1)
    g.lab("L_noqget")
    A("v_and_b32 v50, 3, v1")
    A("v_mov_b32 v51, 0xffff")
    A("v_mov_b32 v52, 0xffff0000")
    A("v_mov_b32 v8, 0")
    A("v_mov_b32 v9, 0")
    A("v_cmp_eq_u32 vcc, 0, v50"); A("s_nop 1"); A("v_cndmask_b32 v8, v8, v51, vcc")
    A("v_cmp_eq_u32 vcc, 1, v50"); A("s_nop 1"); A("v_cndmask_b32 v8, v8, v52, vcc")
    A("v_cmp_eq_u32 vcc, 2, v50"); A("s_nop 1"); A("v_cndmask_b32 v9, v9, v51, vcc")
    A("v_cmp_eq_u32 vcc, 3, v50"); A("s_nop 1"); A("v_cndmask_b32 v9, v9, v52, vcc")
    A("v_mov_b32 v10, 0xff800000")
    A("v_mov_b32 v11, 0")
    for r in list(range(16, 24)) + [24, 25, 28, 29, 32, 33]:
        A(f"v_mov_b32 v{r}, 0")
    A(f"s_mov_b32 s44, {f32bits(128**-0.5 * math.log2(math.e))}")
    A("s_waitcnt lgkmcnt(0)")
    A("s_barrier")
    A(f"ds_read_b128 v[4:7], v3 offset:{L_QF}")
    A("s_waitcnt lgkmcnt(0)")
    stamp('loop')

    def tile(st, wk, wv, more):
        K = KB[st]; V = VB[st]
        A(f"s_waitcnt vmcnt({wk})")
        for t in range(8):
            A(f"v_mfma_f32_16x16x32_bf16 v[{64+4*t}:{67+4*t}], v[{K+4*t}:{K+4*t+3}], v[4:7], 0")
        if more: loadK(st)
        else:
            A("s_nop 7")
        for t in range(8):
            s = 34 + t; d = 64 + 4 * t
            A(f"v_mov_b32_dpp v{s}, v{d} quad_perm:[0,0,0,0] {DPPM}")
            A(f"v_add_f32_dpp v{s}, v{d+1}, v{s} quad_perm:[1,1,1,1] {DPPM}")
            A(f"v_add_f32_dpp v{s}, v{d+2}, v{s} quad_perm:[2,2,2,2] {DPPM}")
            A(f"v_add_f32_dpp v{s}, v{d+3}, v{s} quad_perm:[3,3,3,3] {DPPM}")
        A("v_max3_f32 v50, v34, v35, v36")
        A("v_max3_f32 v51, v37, v38, v39")
        A("v_max3_f32 v50, v40, v41, v50")
        A("v_max3_f32 v50, v50, v51, v10")
        xlane("v_max_f32", "v50", "v51", 32)
        xlane("v_max_f32", "v50", "v51", 16)
        A("v_mul_f32 v12, s44, v50")
        A("v_fma_f32 v13, v10, s44, -v12")
        A("v_mov_b32 v10, v50")
        A("v_exp_f32 v13, v13")
        for t in range(8):
            A(f"v_fma_f32 v{34+t}, v{34+t}, s44, -v12")
        for t in range(8):
            A(f"v_exp_f32 v{34+t}, v{34+t}")
        for r in range(16, 24):
            A(f"v_mul_f32 v{r}, v13, v{r}")
        A("v_add_f32 v50, v34, v35")
        A("v_add_f32 v51, v36, v37")
        A("v_add_f32 v52, v38, v39")
        A("v_add_f32 v53, v40, v41")
        A("v_add_f32 v50, v50, v51")
        A("v_add_f32 v52, v52, v53")
        A("v_add_f32 v50, v50, v52")
        A("v_fma_f32 v11, v11, v13, v50")
        for t in range(8):
            A(f"v_cvt_pk_bf16_f32 v{34+t}, v{34+t}, v{34+t}")
        A(f"s_waitcnt vmcnt({wv})")
        X = [26, 30]
        A(f"v_and_b32 v26, v8, v34")
        A(f"v_and_b32 v27, v9, v34")
        for t in range(8):
            x = X[t & 1]
            if t + 1 < 8:
                xn = X[(t + 1) & 1]
                A(f"v_and_b32 v{xn}, v8, v{35+t}")
                A(f"v_and_b32 v{xn+1}, v9, v{35+t}")
            else:
                A("s_nop 1")
            A(f"v_mfma_f32_16x16x32_bf16 v[16:19], v[{V+4*t}:{V+4*t+3}], v[{x}:{x+3}], v[16:19]")
            A(f"v_mfma_f32_16x16x32_bf16 v[20:23], v[{V+4*t}:{V+4*t+3}], v[{x-2}:{x+1}], v[20:23]")
        if more: loadV(st)

    A("s_mov_b32 s45, 3")
    g.lab("L_main")
    tile(0, 24, 24, True)
    tile(1, 24, 24, True)
    A("s_sub_u32 s45, s45, 1")
    A("s_cmp_lg_u32 s45, 0")
    A("s_cbranch_scc1 L_main")
    tile(0, 24, 16, False)
    tile(1, 8, 0, False)
    stamp('loopend')

    xlane("v_add_f32", "v11", "v51", 32)
    xlane("v_add_f32", "v11", "v51", 16)
    A("s_lshl_b32 s41, s29, 11")
    A("v_lshlrev_b32 v50, 5, v1")
    A("v_add_u32 v50, s41, v50")
    A("s_lshl_b32 s41, s29, 5")
    A("v_lshlrev_b32 v52, 1, v1")
    A("v_add_u32 v52, s41, v52")
    A("v_and_b32 v53, 0x33, v1")
    A("s_nop 4")
    A(f"ds_write_b128 v50, v[16:19] offset:{L_D}")
    A(f"ds_write_b128 v50, v[20:23] offset:{L_D+16}")
    A("v_cmp_eq_u32 vcc, 0, v53")
    A("s_and_saveexec_b64 s[42:43], vcc")
    A(f"ds_write_b64 v52, v[10:11] offset:{L_MLW}")
    A("s_mov_b64 exec, s[42:43]")
    A("s_waitcnt lgkmcnt(0)")
    A("s_barrier")
    stamp('bar4')
    A("v_bfe_u32 v50, v0, 5, 2")
    A("v_lshlrev_b32 v50, 3, v50")
    A("v_lshlrev_b32 v51, 2, v0")
    for w in range(8):
        A(f"ds_read_b64 v[{64+2*w}:{65+2*w}], v50 offset:{L_MLW + 32*w}")
    for w in range(8):
        A(f"ds_read_b32 v{80+w}, v51 offset:{L_D + 2048*w}")
    A("v_lshlrev_b32 v52, 1, v0")
    for r in range(16):
        A(f"v_mov_b32 v{96+r}, 0")
    A("v_lshrrev_b32 v53, 4, v0")
    A("v_lshlrev_b32 v53, 12, v53")
    A("v_and_b32 v54, 15, v0")
    A("v_lshl_add_u32 v53, v54, 3, v53")
    A("s_lshl_b32 s41, s30, 17")
    A("s_lshl_b32 s42, s31, 7")
    A("s_add_u32 s41, s41, s42")
    A("v_add_u32 v53, s41, v53")
    A(f"s_add_u32 s52, s26, {WS_P1}")
    A("s_addc_u32 s53, s27, 0")
    A("s_waitcnt lgkmcnt(8)")
    A("v_max3_f32 v54, v64, v66, v68")
    A("v_max3_f32 v55, v70, v72, v74")
    A("v_max3_f32 v54, v54, v76, v78")
    A("v_max_f32 v54, v54, v55")
    A("v_mul_f32 v55, s44, v54")
    for w in range(8):
        A(f"v_fma_f32 v{64+2*w}, v{64+2*w}, s44, -v55")
    for w in range(8):
        A(f"v_exp_f32 v{64+2*w}, v{64+2*w}")
    A("s_waitcnt lgkmcnt(0)")
    for r in range(16):
        A(f"ds_read_u16_d16_hi v{96+r}, v52 offset:{L_WO + 1024*r}")
    A("v_mul_f32 v56, v64, v80")
    A("v_mul_f32 v58, v64, v65")
    for w in range(1, 8):
        A(f"v_fmac_f32 v56, v{64+2*w}, v{80+w}")
        A(f"v_fmac_f32 v58, v{64+2*w}, v{65+2*w}")
    A("v_mov_b32 v57, s28")
    A("global_store_dwordx2 v53, v[56:57], s[52:53] sc1")
    A("v_mov_b32 v60, v54")
    A("v_mov_b32 v61, v58")
    A("v_mov_b32 v62, s28")
    A("v_mov_b32 v63, s28")
    A("v_lshlrev_b32 v59, 6, v50")
    A("s_lshl_b32 s41, s30, 11")
    A("s_lshl_b32 s42, s31, 4")
    A("s_add_u32 s41, s41, s42")
    A("v_add_u32 v59, s41, v59")
    A(f"s_add_u32 s54, s26, {WS_ML}")
    A("s_addc_u32 s55, s27, 0")
    A("v_and_b32 v55, 0x19f, v0")
    A("v_cmp_eq_u32 vcc, 0, v55")
    A("s_and_saveexec_b64 s[42:43], vcc")
    A("s_cbranch_execz L_noml")
    A("global_store_dwordx4 v59, v[60:63], s[54:55] sc1")
    g.lab("L_noml")
    A("s_mov_b64 exec, s[42:43]")
    stamp('t1pub')

    A("s_cmp_eq_u32 s29, 0")
    A("s_cbranch_scc0 L_t2wait")
    A("s_lshl_b32 s41, s30, 17")
    A("s_lshl_b32 s42, s31, 12")
    A("s_add_u32 s41, s41, s42")
    A("v_lshlrev_b32 v50, 3, v1")
    A("v_add_u32 v50, s41, v50")
    A("s_lshl_b32 s41, s30, 11")
    A("s_bfe_u32 s42, s31, 0x20001")
    A("s_lshl_b32 s42, s42, 9")
    A("s_add_u32 s41, s41, s42")
    A("v_lshrrev_b32 v51, 4, v1")
    A("v_lshlrev_b32 v51, 4, v51")
    A("v_add_u32 v51, s41, v51")
    A(f"s_mov_b32 s45, {spin}")
    g.lab("L_t2poll")
    for u in range(8):
        A(f"global_load_dwordx2 v[{64+2*u}:{65+2*u}], v50, s[52:53] offset:{512*u} sc1")
    for u in range(8):
        A(f"global_load_dwordx4 v[{128+4*u}:{131+4*u}], v51, s[54:55] offset:{64*u} sc1")
    A("s_waitcnt vmcnt(0)")
    A("v_mov_b32 v53, 0")
    for u in range(8):
        A(f"v_xor_b32 v54, s28, v{65+2*u}")
        A(f"v_xor_b32 v55, s28, v{130+4*u}")
        A("v_or3_b32 v53, v53, v54, v55")
    A("v_cmp_ne_u32 vcc, 0, v53")
    A("s_cbranch_vccz L_t2got")
    A(f"s_sleep {sleep}")
    A("s_sub_u32 s45, s45, 1")
    A("s_cmp_lg_u32 s45, 0")
    A("s_cbranch_scc1 L_t2poll")
    g.lab("L_t2got")
    stamp('t2got')
    A("v_max3_f32 v54, v128, v132, v136")
    A("v_max3_f32 v55, v140, v144, v148")
    A("v_max3_f32 v54, v54, v152, v156")
    A("v_max_f32 v54, v54, v55")
    xlane("v_max_f32", "v54", "v55", 16)
    xlane("v_max_f32", "v54", "v55", 32)
    A("v_mul_f32 v55, s44, v54")
    for u in range(8):
        A(f"v_fma_f32 v{128+4*u}, v{128+4*u}, s44, -v55")
    for u in range(8):
        A(f"v_exp_f32 v{128+4*u}, v{128+4*u}")
    A("s_nop 0")
    A("v_mul_f32 v56, v128, v64")
    A("v_mul_f32 v57, v128, v129")
    for u in range(1, 8):
        A(f"v_fmac_f32 v56, v{128+4*u}, v{64+2*u}")
        A(f"v_fmac_f32 v57, v{128+4*u}, v{129+4*u}")
    xlane("v_add_f32", "v56", "v55", 16)
    xlane("v_add_f32", "v57", "v55", 16)
    xlane("v_add_f32", "v56", "v55", 32)
    xlane("v_add_f32", "v57", "v55", 32)
    A("v_rcp_f32 v57, v57")
    A("s_nop 0")
    A("v_mul_f32 v56, v56, v57")
    rnd("v56", "v56")
    A("v_lshlrev_b32 v55, 2, v1")
    A("s_mov_b64 exec, 0xffff")
    A(f"ds_write_b32 v55, v56 offset:{L_OA}")
    A("s_mov_b64 exec, -1")
    g.lab("L_t2wait")
    A("s_waitcnt lgkmcnt(0)")
    A("s_barrier")
    A("v_mov_b32 v50, 0")
    for i in range(4):
        A(f"ds_read_b128 v[{64+4*i}:{67+4*i}], v50 offset:{L_OA + 16*i}")
    A("v_lshrrev_b32 v53, 4, v0")
    A("v_lshlrev_b32 v53, 15, v53")
    A("v_and_b32 v54, 15, v0")
    A("v_lshl_add_u32 v53, v54, 3, v53")
    A("s_lshl_b32 s41, s2, 7")
    A("v_add_u32 v53, s41, v53")
    A(f"s_add_u32 s56, s26, {WS_P2}")
    A("s_addc_u32 s57, s27, 0")
    A("s_waitcnt lgkmcnt(0)")
    A("v_mul_f32 v56, v64, v96")
    A("v_mul_f32 v58, v65, v97")
    for r in range(2, 16, 2):
        A(f"v_fmac_f32 v56, v{64+r}, v{96+r}")
        A(f"v_fmac_f32 v58, v{65+r}, v{97+r}")
    A("v_add_f32 v56, v56, v58")
    A("v_mov_b32 v57, s28")
    A("global_store_dwordx2 v53, v[56:57], s[56:57] sc1")
    stamp('t2pub')
    A("s_cmp_ge_u32 s2, 32")
    A("s_cbranch_scc1 L_fin")

    A(f"s_add_u32 s52, s26, {WS_PF}")
    A("s_addc_u32 s53, s27, 0")
    A("s_lshl_b32 s41, s2, 15")
    A("v_lshlrev_b32 v50, 3, v0")
    A("v_add_u32 v50, s41, v50")
    for k in range(1, 4):
        A(f"v_add_u32 v{50+k}, 8192, v{49+k}")
    A("v_add_u32 v50, 4096, v50")
    for k in range(1, 4):
        A(f"v_add_u32 v{50+k}, 4096, v{50+k}")
    A("s_lshl_b32 s41, s2, 5")
    A("v_and_b32 v54, 15, v0")
    A("v_lshlrev_b32 v54, 1, v54")
    A("v_add_u32 v54, s41, v54")
    A("global_load_ushort v55, v54, s[4:5]")
    A(f"s_mov_b32 s45, {spin}")
    g.lab("L_t3poll")
    for u in range(8):
        A(f"global_load_dwordx2 v[{64+2*u}:{65+2*u}], v{50+u//2}, s[56:57] offset:{(u%2)*4096-4096} sc1")
    for u in range(7):
        A(f"global_load_dwordx2 v[{80+2*u}:{81+2*u}], v{50+u//2}, s[52:53] offset:{(u%2)*4096-4096} sc1")
    A("s_waitcnt vmcnt(0)")
    A("v_mov_b32 v56, 0")
    for u in range(15):
        A(f"v_xor_b32 v57, s28, v{65+2*u}")
        A("v_or_b32 v56, v56, v57")
    A("v_cmp_ne_u32 vcc, 0, v56")
    A("s_cbranch_vccz L_t3got")
    A(f"s_sleep {sleep}")
    A("s_sub_u32 s45, s45, 1")
    A("s_cmp_lg_u32 s45, 0")
    A("s_cbranch_scc1 L_t3poll")
    g.lab("L_t3got")
    stamp('t3got')
    for u in range(1, 8):
        A(f"v_add_f32 v64, v64, v{64+2*u}")
    for u in range(1, 7):
        A(f"v_add_f32 v80, v80, v{80+2*u}")
    xlane("v_add_f32", "v64", "v57", 16)
    xlane("v_add_f32", "v80", "v57", 16)
    xlane("v_add_f32", "v64", "v57", 32)
    xlane("v_add_f32", "v80", "v57", 32)
    A("s_lshl_b32 s41, s29, 7")
    A("v_lshlrev_b32 v57, 2, v1")
    A("v_add_u32 v57, s41, v57")
    A("s_mov_b64 exec, 0xffff")
    A(f"ds_write_b32 v57, v64 offset:{L_R3}")
    A(f"ds_write_b32 v57, v80 offset:{L_R3+64}")
    A("s_mov_b64 exec, -1")
    A("s_waitcnt lgkmcnt(0)")
    A("s_barrier")
    A("s_cmp_eq_u32 s29, 0")
    A("s_cbranch_scc0 L_fin")
    A("v_and_b32 v57, 15, v1")
    A("v_lshlrev_b32 v57, 2, v57")
    for w in range(8):
        A(f"ds_read2_b32 v[{64+2*w}:{65+2*w}], v57 offset0:{L_R3//4 + 32*w - 640 + 640 if False else 0} offset1:0" if False else
          f"ds_read_b32 v{64+2*w}, v57 offset:{L_R3 + 128*w}")
        A(f"ds_read_b32 v{65+2*w}, v57 offset:{L_R3 + 128*w + 64}")
    A("s_waitcnt lgkmcnt(0)")
    for w in range(1, 8):
        A(f"v_add_f32 v64, v64, v{64+2*w}")
        A(f"v_add_f32 v65, v65, v{65+2*w}")
    rnd("v64", "v64"); rnd("v65", "v65")
    A(f"v_mul_f32 v66, {f32bits(-math.log2(math.e))}, v65")
    A("v_exp_f32 v66, v66")
    A("s_nop 0")
    A("v_add_f32 v66, 1.0, v66")
    A("v_rcp_f32 v66, v66")
    A("s_nop 0")
    A("v_mul_f32 v66, v66, v65")
    rnd("v66", "v66")
    A("v_mul_f32 v66, v66, v64")
    rnd("v66", "v66")
    A("v_lshlrev_b32 v55, 16, v55")
    A("v_add_f32 v66, v66, v55")
    A("v_cvt_pk_bf16_f32 v66, v66, v66")
    A("s_mov_b64 exec, 0xffff")
    A("global_store_short v54, v66, s[22:23]")
    A("s_cmp_eq_u32 s2, 0")
    A("s_cbranch_scc0 L_fin")
    A("s_mov_b64 exec, 1")
    A("v_mov_b32 v57, 0")
    A("v_mov_b32 v58, s28")
    A("global_store_dword v57, v58, s[26:27] sc1")
    g.lab("L_fin")
    if stamps:
        A("s_mov_b64 exec, -1")
        stamp('end')
        A("s_waitcnt lgkmcnt(0)")
        A("s_lshl_b32 s41, s2, 3")
        A("s_add_u32 s41, s41, s29")
        A("s_lshl_b32 s41, s41, 7")
        A(f"s_add_u32 s41, s41, {WS_ST}")
        A("v_mov_b32 v50, s41")
        A("s_mov_b64 exec, 1")
        for i in range(nst[0]):
            A(f"v_mov_b32 v51, s{70+2*i}")
            A(f"global_store_dword v50, v51, s[26:27] offset:{4*i}")
            A("s_nop 1")
    g.lab("L_end")
    A("s_endpgm")

    head = f"""; fused layernorm + GQA decode attention + projections + GEGLU FFN gate (generated by dev/gen.py)
; @launch grid=(256,1,1) block=(512,1,1) lds={LDS_BYTES}
.amdgcn_target "amdgcn-amd-amdhsa--gfx950"
.text
.globl {NAME}_kernel
.p2align 8
.type {NAME}_kernel,@function
{NAME}_kernel:
"""
    tail = f"""
.section .rodata,"a"
.p2align 6
.amdhsa_kernel {NAME}_kernel
  .amdhsa_next_free_vgpr 256
  .amdhsa_next_free_sgpr 102
  .amdhsa_accum_offset 256
  .amdhsa_group_segment_fixed_size 0
  .amdhsa_kernarg_size 96
  .amdhsa_user_sgpr_count 2
  .amdhsa_user_sgpr_kernarg_segment_ptr 1
  .amdhsa_system_sgpr_workgroup_id_x 1
.end_amdhsa_kernel
"""
    return head + g.text() + tail

if __name__ == '__main__':
    import argparse
    ap = argparse.ArgumentParser()
    ap.add_argument('-o', default='/dev/stdout')
    ap.add_argument('--stamps', action='store_true')
    ap.add_argument('--pol', default='nt')
    ap.add_argument('--wpol', default='nt')
    a = ap.parse_args()
    open(a.o, 'w').write(gen(pol=a.pol, wpol=a.wpol, stamps=a.stamps))
```

```python
import math, sys

NAME = 'recurrent_scan__gqa_block_cached__glu_gated_geglu__decode'

WS_NONCE = 0
WS_QG = 0x1000
WS_ML = 0x8000
WS_P1 = 0x10000
WS_P2 = 0x200000
WS_PF = 0x300000
WS_ST = 0x400000

L_RED = 0
L_QF = 1024
L_MLW = 2048
L_OA = 2432
L_R3 = 2560
L_D = 4096
L_WO = 20480
LDS_BYTES = 36864

class G:
    def __init__(self):
        self.L = []
    def A(self, s):
        self.L.append(s)
    def lab(self, s):
        self.L.append(s + ':')
    def text(self):
        return "\n".join(("    " + x) if not x.endswith(":") else x for x in self.L)

def f32bits(x):
    import struct
    return '0x%08x' % struct.unpack('<I', struct.pack('<f', x))[0]

DPPM = 'row_mask:0xf bank_mask:0xf'

def gen(pol='nt', wpol='nt', stamps=False, spin=200000, sleep=1, vpol=None):
    if vpol is None: vpol = pol
    g = G(); A = g.A
    nst = [0]
    def stamp(name):
        if stamps:
            i = nst[0]; nst[0] += 1
            assert 70 + 2 * i + 1 < 100
            A(f"s_memrealtime s[{70+2*i}:{71+2*i}]")

    def rnd(dst, src):
        A(f"v_cvt_pk_bf16_f32 {dst}, {src}, {src}")
        A(f"v_and_b32 {dst}, 0xffff0000, {dst}")

    def xlane(op, v, t, which):
        A(f"v_mov_b32 {t}, {v}")
        A("s_nop 1")
        A(f"v_permlane{which}_swap_b32 {t}, {v}")
        A(f"{op} {v}, {t}, {v}")

    def allreduce_add(v, t):
        for r in (8, 4, 2, 1):
            A("s_nop 1")
            A(f"v_add_f32_dpp {v}, {v}, {v} row_ror:{r} {DPPM}")
        xlane("v_add_f32", v, t, 16)
        xlane("v_add_f32", v, t, 32)

    stamp('start')
    A("s_load_dwordx16 s[4:19], s[0:1], 0")
    A("s_load_dwordx8 s[20:27], s[0:1], 64")
    A("s_cmp_ge_u32 s2, 256")
    A("s_cbranch_scc1 L_end")
    A("v_and_b32 v1, 63, v0")
    A("v_lshrrev_b32 v50, 6, v0")
    A("s_and_b32 s30, s2, 7")
    A("s_lshr_b32 s31, s2, 3")
    A("v_readfirstlane_b32 s29, v50")
    A("v_lshlrev_b32 v3, 4, v1")
    A("v_lshrrev_b32 v50, 4, v1")
    A("v_bfe_u32 v51, v1, 2, 2")
    A("v_and_b32 v52, 3, v1")
    A("v_lshlrev_b32 v2, 6, v50")
    A("v_lshl_add_u32 v2, v51, 8, v2")
    A("v_lshl_add_u32 v2, v52, 4, v2")
    A("s_lshl_b32 s36, s30, 24")
    A("s_lshl_b32 s37, s31, 19")
    A("s_lshl_b32 s38, s29, 16")
    A("s_add_u32 s36, s36, s37")
    A("s_add_u32 s36, s36, s38")
    A("s_add_u32 s36, s36, 4096")
    A("s_lshl_b32 s39, s29, 6")
    A("v_lshrrev_b32 v53, 1, v1")
    A("v_add_u32 v53, s39, v53")
    A("v_and_b32 v52, 1, v1")
    A("v_lshlrev_b32 v54, 1, v53")
    A("s_lshl_b32 s37, s30, 10")
    A("s_lshl_b32 s38, s31, 5")
    A("s_add_u32 s37, s37, s38")
    A("v_lshlrev_b32 v55, 13, v53")
    A("v_lshl_add_u32 v55, v52, 4, v55")
    A("v_add_u32 v55, s37, v55")
    A("v_add_u32 v49, 0x40000, v55")
    A("s_min_u32 s40, s31, 27")
    A("s_mul_i32 s41, s30, 28")
    A("s_add_u32 s40, s40, s41")
    A("s_lshl_b32 s41, s40, 4")
    A("v_mul_u32_u24 v48, 3584, v53")
    A("v_add_u32 v48, s41, v48")
    A("v_cmp_eq_u32 vcc, 1, v52")
    A("s_lshl_b32 s42, s30, 9")
    A("s_bfe_u32 s43, s31, 0x20001")
    A("s_lshl_b32 s43, s43, 7")
    A("s_add_u32 s42, s42, s43")
    A("s_lshr_b32 s43, s31, 3")
    A("s_lshl_b32 s43, s43, 5")
    A("s_add_u32 s42, s42, s43")
    A("s_and_b32 s43, s29, 1")
    A("s_lshl_b32 s43, s43, 4")
    A("s_add_u32 s42, s42, s43")
    A("s_bfe_u32 s43, s29, 0x10001")
    A("s_lshl_b32 s43, s43, 2")
    A("s_add_u32 s42, s42, s43")
    A("s_and_b32 s43, s31, 1")
    A("s_lshl_b32 s43, s43, 1")
    A("s_add_u32 s42, s42, s43")
    A("s_lshr_b32 s43, s29, 2")
    A("s_add_u32 s42, s42, s43")
    A("s_lshl_b32 s42, s42, 10")
    A("s_lshl_b32 s43, s40, 3")
    A("s_add_u32 s43, s43, s29")
    A("s_lshl_b32 s43, s43, 10")
    A("s_lshl_b32 s44, s29, 11")
    A(f"s_add_u32 s44, s44, {L_WO}")
    A("s_waitcnt lgkmcnt(0)")
    A("s_load_dword s28, s[26:27], 0")
    A("global_load_dwordx4 v[56:59], v3, s[4:5]")
    A("global_load_ushort v60, v54, s[4:5]")
    A("global_load_ushort v61, v54, s[4:5] offset:64")
    A(f"global_load_dwordx4 v[224:227], v55, s[10:11] {wpol}")
    A(f"global_load_dwordx4 v[228:231], v49, s[10:11] {wpol}")
    A("v_mov_b32 v62, s16")
    A("v_mov_b32 v63, s17")
    A("v_mov_b32 v50, s18")
    A("v_mov_b32 v51, s19")
    A("v_cndmask_b32 v62, v62, v50, vcc")
    A("v_cndmask_b32 v63, v63, v51, vcc")
    A("v_add_co_u32 v62, vcc, v62, v48")
    A("s_nop 1")
    A("v_addc_co_u32 v63, vcc, 0, v63, vcc")
    A("v_add_co_u32 v50, vcc, 0x1c000, v62")
    A("s_nop 1")
    A("v_addc_co_u32 v51, vcc, 0, v63, vcc")
    A(f"global_load_dwordx4 v[232:235], v[62:63], off {wpol}")
    A(f"global_load_dwordx4 v[236:239], v[50:51], off {wpol}")
    A("s_add_u32 s46, s20, s43")
    A("s_addc_u32 s47, s21, 0")
    A(f"global_load_dwordx4 v[240:243], v3, s[46:47] {wpol}")
    A("s_add_u32 s46, s12, s42")
    A("s_addc_u32 s47, s13, 0")
    A("s_mov_b32 m0, s44")
    A("s_add_u32 s48, s46, 8192")
    A("s_addc_u32 s49, s47, 0")
    A(f"global_load_lds_dwordx4 v3, s[46:47] {wpol}")
    A("s_add_u32 m0, s44, 1024")
    A("s_nop 0")
    A(f"global_load_lds_dwordx4 v3, s[48:49] {wpol}")
    A("s_add_u32 s32, s6, s36")
    A("s_addc_u32 s33, s7, 0")
    A("s_add_u32 s34, s8, s36")
    A("s_addc_u32 s35, s9, 0")

    KB = [96, 160]; VB = [128, 192]
    def loadK(st):
        for i in range(8):
            r = KB[st] + 4 * i
            A(f"global_load_dwordx4 v[{r}:{r+3}], v2, s[32:33] offset:{i*1024-4096} {pol}")
        A("s_add_u32 s32, s32, 8192")
        A("s_addc_u32 s33, s33, 0")
    def loadV(st):
        for i in range(8):
            r = VB[st] + 4 * i
            A(f"global_load_dwordx4 v[{r}:{r+3}], v3, s[34:35] offset:{i*1024-4096} {vpol}")
        A("s_add_u32 s34, s34, 8192")
        A("s_addc_u32 s35, s35, 0")

    A("s_cmp_eq_u32 s29, 0")
    A("s_cbranch_scc1 L_w0_noprefetch")
    loadK(0); loadV(0); loadK(1); loadV(1)
    A("s_branch L_pre_done")
    g.lab("L_w0_noprefetch")
    A("s_waitcnt vmcnt(0)")
    g.lab("L_pre_done")
    stamp('issued')

    A("s_waitcnt vmcnt(41) lgkmcnt(0)")
    A("s_add_u32 s28, s28, 1")
    for i in range(4):
        A(f"v_lshlrev_b32 v{80+2*i}, 16, v{56+i}")
        A(f"v_and_b32 v{81+2*i}, 0xffff0000, v{56+i}")
    A("v_add_f32 v88, v80, v81")
    A("v_add_f32 v89, v82, v83")
    A("v_add_f32 v90, v84, v85")
    A("v_add_f32 v91, v86, v87")
    A("v_add_f32 v88, v88, v89")
    A("v_add_f32 v90, v90, v91")
    A("v_add_f32 v88, v88, v90")
    allreduce_add("v88", "v89")
    A(f"v_mul_f32 v88, {f32bits(1/512)}, v88")
    for i in range(8):
        A(f"v_sub_f32 v{80+i}, v{80+i}, v88")
    A("v_mul_f32 v90, v80, v80")
    for i in range(1, 8):
        A(f"v_fmac_f32 v90, v{80+i}, v{80+i}")
    allreduce_add("v90", "v89")
    A(f"v_mul_f32 v90, {f32bits(1/512)}, v90")
    rnd("v88", "v88")
    rnd("v90", "v90")
    A(f"v_add_f32 v90, {f32bits(1e-5)}, v90")
    rnd("v90", "v90")
    A("v_sqrt_f32 v90, v90")
    A("s_nop 0")
    rnd("v90", "v90")
    A("v_rcp_f32 v90, v90")
    A("s_waitcnt vmcnt(39)")
    A("v_lshlrev_b32 v60, 16, v60")
    A("v_lshlrev_b32 v61, 16, v61")
    A("v_sub_f32 v60, v60, v88")
    A("v_sub_f32 v61, v61, v88")
    rnd("v60", "v60"); rnd("v61", "v61")
    A("v_mul_f32 v60, v60, v90")
    A("v_mul_f32 v61, v61, v90")
    rnd("v60", "v60"); rnd("v61", "v61")
    stamp('ln')

    def prods(acc0, w0, w1):
        for i in range(4):
            A(f"v_lshlrev_b32 v80, 16, v{w0+i}")
            A(f"v_and_b32 v81, 0xffff0000, v{w0+i}")
            A(f"v_lshlrev_b32 v82, 16, v{w1+i}")
            A(f"v_and_b32 v83, 0xffff0000, v{w1+i}")
            A(f"v_mul_f32 v{acc0+2*i}, v60, v80")
            A(f"v_mul_f32 v{acc0+2*i+1}, v60, v81")
            A(f"v_fmac_f32 v{acc0+2*i}, v61, v82")
            A(f"v_fmac_f32 v{acc0+2*i+1}, v61, v83")
    A("s_waitcnt vmcnt(37)")
    prods(64, 224, 228)
    A("s_waitcnt vmcnt(35)")
    prods(72, 232, 236)
    A("s_nop 1")
    for i in range(8):
        A(f"v_permlane32_swap_b32 v{64+2*i}, v{65+2*i}")
    for i in range(8):
        A(f"v_add_f32 v{64+2*i}, v{64+2*i}, v{65+2*i}")
    A("s_nop 1")
    for i in range(4):
        A(f"v_permlane16_swap_b32 v{64+4*i}, v{66+4*i}")
    for i in range(4):
        A(f"v_add_f32 v{64+4*i}, v{64+4*i}, v{66+4*i}")
    for r in (8, 4, 2):
        A("s_nop 1")
        for i in range(4):
            A(f"v_add_f32_dpp v{64+4*i}, v{64+4*i}, v{64+4*i} row_ror:{r} {DPPM}")
    A("v_lshrrev_b32 v80, 4, v1")
    A("v_and_b32 v81, 1, v80")
    A("v_lshrrev_b32 v80, 1, v80")
    A("v_lshl_add_u32 v80, v81, 1, v80")
    A("v_lshlrev_b32 v80, 2, v80")
    A("v_and_b32 v81, 1, v1")
    A("v_lshl_add_u32 v80, v81, 6, v80")
    A("s_lshl_b32 s41, s29, 7")
    A("v_add_u32 v80, s41, v80")
    A("v_and_b32 v81, 14, v1")
    A("v_cmp_eq_u32 vcc, 0, v81")
    A("s_and_saveexec_b64 s[42:43], vcc")
    for i in range(4):
        A(f"ds_write_b32 v80, v{64+4*i} offset:{L_RED + 16*i}")
    A("s_mov_b64 exec, s[42:43]")
    A("s_waitcnt lgkmcnt(0)")
    A("s_barrier")
    stamp('bar1')
    A(f"s_add_u32 s50, s26, {WS_QG}")
    A("s_addc_u32 s51, s27, 0")
    A("s_cmp_eq_u32 s29, 0")
    A("s_cbranch_scc0 L_noqpub")
    A("v_and_b32 v80, 7, v1")
    A("v_lshrrev_b32 v81, 2, v80")
    A("v_and_b32 v82, 3, v80")
    A("v_lshlrev_b32 v81, 6, v81")
    A("v_lshl_add_u32 v81, v82, 3, v81")
    for w in range(8):
        A(f"ds_read_b64 v[{64+2*w}:{65+2*w}], v81 offset:{L_RED + 128*w}")
    A("s_lshl_b32 s41, s30, 11")
    A("s_lshl_b32 s42, s31, 6")
    A("s_add_u32 s41, s41, s42")
    A("v_lshlrev_b32 v82, 3, v80")
    A("v_add_u32 v82, s41, v82")
    A("s_waitcnt lgkmcnt(0)")
    for w in range(1, 8):
        A(f"v_add_f32 v64, v64, v{64+2*w}")
        A(f"v_add_f32 v65, v65, v{65+2*w}")
    A("v_cvt_pk_bf16_f32 v64, v64, v65")
    A("v_mov_b32 v65, s28")
    A("s_mov_b64 exec, 0xff")
    A("global_store_dwordx2 v82, v[64:65], s[50:51] sc1")
    A("s_mov_b64 exec, -1")
    g.lab("L_noqpub")
    A("s_lshl_b32 s41, s29, 2")
    A(f"s_add_u32 s41, s41, {L_RED + 32}")
    A("v_mov_b32 v80, s41")
    for w in range(8):
        A(f"ds_read2_b32 v[{64+2*w}:{65+2*w}], v80 offset0:{32*w} offset1:{32*w+16}")
    A("s_waitcnt lgkmcnt(0)")
    for w in range(1, 8):
        A(f"v_add_f32 v64, v64, v{64+2*w}")
        A(f"v_add_f32 v65, v65, v{65+2*w}")
    rnd("v64", "v64"); rnd("v65", "v65")
    A("v_mul_f32 v66, v64, v64")
    A(f"v_mov_b32 v67, {f32bits(0.044715)}")
    A("v_fma_f32 v66, v66, v67, 1.0")
    A("v_mul_f32 v66, v66, v64")
    A(f"v_mul_f32 v66, {f32bits(-2*math.sqrt(2/math.pi)*math.log2(math.e))}, v66")
    A("v_exp_f32 v66, v66")
    A("s_nop 0")
    A("v_add_f32 v66, 1.0, v66")
    A("v_rcp_f32 v66, v66")
    A("s_nop 0")
    A("v_mul_f32 v66, v66, v64")
    rnd("v66", "v66")
    A("v_mul_f32 v66, v66, v65")
    rnd("v66", "v66")
    A("s_waitcnt vmcnt(34)")
    for i in range(4):
        A(f"v_lshlrev_b32 v{72+2*i}, 16, v{240+i}")
        A(f"v_and_b32 v{73+2*i}, 0xffff0000, v{240+i}")
    for i in range(8):
        A(f"v_mul_f32 v{72+i}, v66, v{72+i}")
    A("s_lshl_b32 s41, s29, 11")
    A("v_lshlrev_b32 v80, 5, v1")
    A("v_add_u32 v80, s41, v80")
    A(f"ds_write_b128 v80, v[72:75] offset:{L_D}")
    A(f"ds_write_b128 v80, v[76:79] offset:{L_D+16}")
    A("s_waitcnt lgkmcnt(0)")
    A("s_barrier")
    stamp('bar2')
    A("v_lshlrev_b32 v80, 2, v0")
    for w in range(8):
        A(f"ds_read_b32 v{64+w}, v80 offset:{L_D + 2048*w}")
    A("v_lshrrev_b32 v81, 4, v0")
    A("v_lshlrev_b32 v81, 15, v81")
    A("v_and_b32 v82, 15, v0")
    A("v_lshl_add_u32 v81, v82, 3, v81")
    A("s_lshl_b32 s41, s40, 7")
    A("v_add_u32 v81, s41, v81")
    A(f"s_add_u32 s52, s26, {WS_PF}")
    A("s_addc_u32 s53, s27, 0")
    A("s_waitcnt lgkmcnt(0)")
    for w in range(1, 8):
        A(f"v_add_f32 v64, v64, v{64+w}")
    A("v_mov_b32 v65, s28")
    A("s_cmp_lt_u32 s31, 28")
    A("s_cbranch_scc0 L_nofpub")
    A("global_store_dwordx2 v81, v[64:65], s[52:53] sc1")
    g.lab("L_nofpub")
    A("s_cmp_eq_u32 s29, 0")
    A("s_cbranch_scc0 L_noqget")
    A("v_bfe_u32 v80, v1, 2, 2")
    A("v_lshlrev_b32 v80, 9, v80")
    A("v_lshrrev_b32 v81, 4, v1")
    A("v_lshl_add_u32 v80, v81, 7, v80")
    A("v_and_b32 v81, 3, v1")
    A("v_lshl_add_u32 v80, v81, 5, v80")
    A("s_lshl_b32 s41, s30, 11")
    A("v_add_u32 v80, s41, v80")
    A(f"s_mov_b32 s45, {spin}")
    g.lab("L_qpoll")
    A("global_load_dwordx4 v[64:67], v80, s[50:51] sc1")
    A("global_load_dwordx4 v[68:71], v80, s[50:51] offset:16 sc1")
    A("s_waitcnt vmcnt(0)")
    A("v_xor_b32 v72, s28, v65")
    A("v_xor_b32 v73, s28, v67")
    A("v_xor_b32 v74, s28, v69")
    A("v_xor_b32 v75, s28, v71")
    A("v_or3_b32 v72, v72, v73, v74")
    A("v_or_b32 v72, v72, v75")
    A("v_cmp_ne_u32 vcc, 0, v72")
    A("s_cbranch_vccz L_qgot")
    A(f"s_sleep {sleep}")
    A("s_sub_u32 s45, s45, 1")
    A("s_cmp_lg_u32 s45, 0")
    A("s_cbranch_scc1 L_qpoll")
    g.lab("L_qgot")
    A("v_mov_b32 v65, v66")
    A("v_mov_b32 v66, v68")
    A("v_mov_b32 v67, v70")
    A(f"ds_write_b128 v3, v[64:67] offset:{L_QF}")
    stamp('qgot')
    loadK(0); loadV(0); loadK(1); loadV(1)
    g.lab("L_noqget")
    A("v_and_b32 v50, 3, v1")
    A("v_mov_b32 v51, 0xffff")
    A("v_mov_b32 v52, 0xffff0000")
    A("v_mov_b32 v8, 0")
    A("v_mov_b32 v9, 0")
    A("v_cmp_eq_u32 vcc, 0, v50"); A("s_nop 1"); A("v_cndmask_b32 v8, v8, v51, vcc")
    A("v_cmp_eq_u32 vcc, 1, v50"); A("s_nop 1"); A("v_cndmask_b32 v8, v8, v52, vcc")
    A("v_cmp_eq_u32 vcc, 2, v50"); A("s_nop 1"); A("v_cndmask_b32 v9, v9, v51, vcc")
    A("v_cmp_eq_u32 vcc, 3, v50"); A("s_nop 1"); A("v_cndmask_b32 v9, v9, v52, vcc")
    A("v_mov_b32 v10, 0xff800000")
    A("v_mov_b32 v11, 0")
    for r in list(range(16, 24)) + [24, 25, 28, 29, 32, 33]:
        A(f"v_mov_b32 v{r}, 0")
    A(f"s_mov_b32 s44, {f32bits(128**-0.5 * math.log2(math.e))}")
    A("s_waitcnt lgkmcnt(0)")
    A("s_barrier")
    A(f"ds_read_b128 v[4:7], v3 offset:{L_QF}")
    A("s_waitcnt lgkmcnt(0)")
    stamp('loop')

    def tile(st, wk, wv, more):
        K = KB[st]; V = VB[st]
        A(f"s_waitcnt vmcnt({wk})")
        for t in range(8):
            A(f"v_mfma_f32_16x16x32_bf16 v[{64+4*t}:{67+4*t}], v[{K+4*t}:{K+4*t+3}], v[4:7], 0")
        if more: loadK(st)
        else:
            A("s_nop 7")
        for t in range(8):
            s = 34 + t; d = 64 + 4 * t
            A(f"v_mov_b32_dpp v{s}, v{d} quad_perm:[0,0,0,0] {DPPM}")
            A(f"v_add_f32_dpp v{s}, v{d+1}, v{s} quad_perm:[1,1,1,1] {DPPM}")
            A(f"v_add_f32_dpp v{s}, v{d+2}, v{s} quad_perm:[2,2,2,2] {DPPM}")
            A(f"v_add_f32_dpp v{s}, v{d+3}, v{s} quad_perm:[3,3,3,3] {DPPM}")
        A("v_max3_f32 v50, v34, v35, v36")
        A("v_max3_f32 v51, v37, v38, v39")
        A("v_max3_f32 v50, v40, v41, v50")
        A("v_max3_f32 v50, v50, v51, v10")
        xlane("v_max_f32", "v50", "v51", 32)
        xlane("v_max_f32", "v50", "v51", 16)
        A("v_mul_f32 v12, s44, v50")
        A("v_fma_f32 v13, v10, s44, -v12")
        A("v_mov_b32 v10, v50")
        A("v_exp_f32 v13, v13")
        for t in range(8):
            A(f"v_fma_f32 v{34+t}, v{34+t}, s44, -v12")
        for t in range(8):
            A(f"v_exp_f32 v{34+t}, v{34+t}")
        for r in range(16, 24):
            A(f"v_mul_f32 v{r}, v13, v{r}")
        A("v_add_f32 v50, v34, v35")
        A("v_add_f32 v51, v36, v37")
        A("v_add_f32 v52, v38, v39")
        A("v_add_f32 v53, v40, v41")
        A("v_add_f32 v50, v50, v51")
        A("v_add_f32 v52, v52, v53")
        A("v_add_f32 v50, v50, v52")
        A("v_fma_f32 v11, v11, v13, v50")
        for t in range(8):
            A(f"v_cvt_pk_bf16_f32 v{34+t}, v{34+t}, v{34+t}")
        A(f"s_waitcnt vmcnt({wv})")
        X = [26, 30]
        A(f"v_and_b32 v26, v8, v34")
        A(f"v_and_b32 v27, v9, v34")
        for t in range(8):
            x = X[t & 1]
            if t + 1 < 8:
                xn = X[(t + 1) & 1]
                A(f"v_and_b32 v{xn}, v8, v{35+t}")
                A(f"v_and_b32 v{xn+1}, v9, v{35+t}")
            else:
                A("s_nop 1")
            A(f"v_mfma_f32_16x16x32_bf16 v[16:19], v[{V+4*t}:{V+4*t+3}], v[{x}:{x+3}], v[16:19]")
            A(f"v_mfma_f32_16x16x32_bf16 v[20:23], v[{V+4*t}:{V+4*t+3}], v[{x-2}:{x+1}], v[20:23]")
        if more: loadV(st)

    A("s_mov_b32 s45, 3")
    g.lab("L_main")
    tile(0, 24, 24, True)
    tile(1, 24, 24, True)
    A("s_sub_u32 s45, s45, 1")
    A("s_cmp_lg_u32 s45, 0")
    A("s_cbranch_scc1 L_main")
    tile(0, 24, 16, False)
    tile(1, 8, 0, False)
    stamp('loopend')

    xlane("v_add_f32", "v11", "v51", 32)
    xlane("v_add_f32", "v11", "v51", 16)
    A("s_lshl_b32 s41, s29, 11")
    A("v_lshlrev_b32 v50, 5, v1")
    A("v_add_u32 v50, s41, v50")
    A("s_lshl_b32 s41, s29, 5")
    A("v_lshlrev_b32 v52, 1, v1")
    A("v_add_u32 v52, s41, v52")
    A("v_and_b32 v53, 0x33, v1")
    A("s_nop 4")
    A(f"ds_write_b128 v50, v[16:19] offset:{L_D}")
    A(f"ds_write_b128 v50, v[20:23] offset:{L_D+16}")
    A("v_cmp_eq_u32 vcc, 0, v53")
    A("s_and_saveexec_b64 s[42:43], vcc")
    A(f"ds_write_b64 v52, v[10:11] offset:{L_MLW}")
    A("s_mov_b64 exec, s[42:43]")
    A("s_waitcnt lgkmcnt(0)")
    A("s_barrier")
    stamp('bar4')
    A("v_bfe_u32 v50, v0, 5, 2")
    A("v_lshlrev_b32 v50, 3, v50")
    A("v_lshlrev_b32 v51, 2, v0")
    for w in range(8):
        A(f"ds_read_b64 v[{64+2*w}:{65+2*w}], v50 offset:{L_MLW + 32*w}")
    for w in range(8):
        A(f"ds_read_b32 v{80+w}, v51 offset:{L_D + 2048*w}")
    A("v_lshlrev_b32 v52, 1, v0")
    for r in range(16):
        A(f"v_mov_b32 v{96+r}, 0")
    A("v_lshrrev_b32 v53, 4, v0")
    A("v_lshlrev_b32 v53, 12, v53")
    A("v_and_b32 v54, 15, v0")
    A("v_lshl_add_u32 v53, v54, 3, v53")
    A("s_lshl_b32 s41, s30, 17")
    A("s_lshl_b32 s42, s31, 7")
    A("s_add_u32 s41, s41, s42")
    A("v_add_u32 v53, s41, v53")
    A(f"s_add_u32 s52, s26, {WS_P1}")
    A("s_addc_u32 s53, s27, 0")
    A("s_waitcnt lgkmcnt(8)")
    A("v_max3_f32 v54, v64, v66, v68")
    A("v_max3_f32 v55, v70, v72, v74")
    A("v_max3_f32 v54, v54, v76, v78")
    A("v_max_f32 v54, v54, v55")
    A("v_mul_f32 v55, s44, v54")
    for w in range(8):
        A(f"v_fma_f32 v{64+2*w}, v{64+2*w}, s44, -v55")
    for w in range(8):
        A(f"v_exp_f32 v{64+2*w}, v{64+2*w}")
    A("s_waitcnt lgkmcnt(0)")
    for r in range(16):
        A(f"ds_read_u16_d16_hi v{96+r}, v52 offset:{L_WO + 1024*r}")
    A("v_mul_f32 v56, v64, v80")
    A("v_mul_f32 v58, v64, v65")
    for w in range(1, 8):
        A(f"v_fmac_f32 v56, v{64+2*w}, v{80+w}")
        A(f"v_fmac_f32 v58, v{64+2*w}, v{65+2*w}")
    A("v_mov_b32 v57, s28")
    A("global_store_dwordx2 v53, v[56:57], s[52:53] sc1")
    A("v_mov_b32 v60, v54")
    A("v_mov_b32 v61, v58")
    A("v_mov_b32 v62, s28")
    A("v_mov_b32 v63, s28")
    A("v_lshlrev_b32 v59, 6, v50")
    A("s_lshl_b32 s41, s30, 11")
    A("s_lshl_b32 s42, s31, 4")
    A("s_add_u32 s41, s41, s42")
    A("v_add_u32 v59, s41, v59")
    A(f"s_add_u32 s54, s26, {WS_ML}")
    A("s_addc_u32 s55, s27, 0")
    A("v_and_b32 v55, 0x19f, v0")
    A("v_cmp_eq_u32 vcc, 0, v55")
    A("s_and_saveexec_b64 s[42:43], vcc")
    A("s_cbranch_execz L_noml")
    A("global_store_dwordx4 v59, v[60:63], s[54:55] sc1")
    g.lab("L_noml")
    A("s_mov_b64 exec, s[42:43]")
    stamp('t1pub')

    A("s_cmp_eq_u32 s29, 0")
    A("s_cbranch_scc0 L_t2wait")
    A("s_lshl_b32 s41, s30, 17")
    A("s_lshl_b32 s42, s31, 12")
    A("s_add_u32 s41, s41, s42")
    A("v_lshlrev_b32 v50, 3, v1")
    A("v_add_u32 v50, s41, v50")
    A("s_lshl_b32 s41, s30, 11")
    A("s_bfe_u32 s42, s31, 0x20001")
    A("s_lshl_b32 s42, s42, 9")
    A("s_add_u32 s41, s41, s42")
    A("v_lshrrev_b32 v51, 4, v1")
    A("v_lshlrev_b32 v51, 4, v51")
    A("v_add_u32 v51, s41, v51")
    A(f"s_mov_b32 s45, {spin}")
    g.lab("L_t2poll")
    for u in range(8):
        A(f"global_load_dwordx2 v[{64+2*u}:{65+2*u}], v50, s[52:53] offset:{512*u} sc1")
    for u in range(8):
        A(f"global_load_dwordx4 v[{128+4*u}:{131+4*u}], v51, s[54:55] offset:{64*u} sc1")
    A("s_waitcnt vmcnt(0)")
    A("v_mov_b32 v53, 0")
    for u in range(8):
        A(f"v_xor_b32 v54, s28, v{65+2*u}")
        A(f"v_xor_b32 v55, s28, v{130+4*u}")
        A("v_or3_b32 v53, v53, v54, v55")
    A("v_cmp_ne_u32 vcc, 0, v53")
    A("s_cbranch_vccz L_t2got")
    A(f"s_sleep {sleep}")
    A("s_sub_u32 s45, s45, 1")
    A("s_cmp_lg_u32 s45, 0")
    A("s_cbranch_scc1 L_t2poll")
    g.lab("L_t2got")
    stamp('t2got')
    A("v_max3_f32 v54, v128, v132, v136")
    A("v_max3_f32 v55, v140, v144, v148")
    A("v_max3_f32 v54, v54, v152, v156")
    A("v_max_f32 v54, v54, v55")
    xlane("v_max_f32", "v54", "v55", 16)
    xlane("v_max_f32", "v54", "v55", 32)
    A("v_mul_f32 v55, s44, v54")
    for u in range(8):
        A(f"v_fma_f32 v{128+4*u}, v{128+4*u}, s44, -v55")
    for u in range(8):
        A(f"v_exp_f32 v{128+4*u}, v{128+4*u}")
    A("s_nop 0")
    A("v_mul_f32 v56, v128, v64")
    A("v_mul_f32 v57, v128, v129")
    for u in range(1, 8):
        A(f"v_fmac_f32 v56, v{128+4*u}, v{64+2*u}")
        A(f"v_fmac_f32 v57, v{128+4*u}, v{129+4*u}")
    xlane("v_add_f32", "v56", "v55", 16)
    xlane("v_add_f32", "v57", "v55", 16)
    xlane("v_add_f32", "v56", "v55", 32)
    xlane("v_add_f32", "v57", "v55", 32)
    A("v_rcp_f32 v57, v57")
    A("s_nop 0")
    A("v_mul_f32 v56, v56, v57")
    rnd("v56", "v56")
    A("v_lshlrev_b32 v55, 2, v1")
    A("s_mov_b64 exec, 0xffff")
    A(f"ds_write_b32 v55, v56 offset:{L_OA}")
    A("s_mov_b64 exec, -1")
    g.lab("L_t2wait")
    A("s_waitcnt lgkmcnt(0)")
    A("s_barrier")
    A("v_mov_b32 v50, 0")
    for i in range(4):
        A(f"ds_read_b128 v[{64+4*i}:{67+4*i}], v50 offset:{L_OA + 16*i}")
    A("v_lshrrev_b32 v53, 4, v0")
    A("v_lshlrev_b32 v53, 15, v53")
    A("v_and_b32 v54, 15, v0")
    A("v_lshl_add_u32 v53, v54, 3, v53")
    A("s_lshl_b32 s41, s2, 7")
    A("v_add_u32 v53, s41, v53")
    A(f"s_add_u32 s56, s26, {WS_P2}")
    A("s_addc_u32 s57, s27, 0")
    A("s_waitcnt lgkmcnt(0)")
    A("v_mul_f32 v56, v64, v96")
    A("v_mul_f32 v58, v65, v97")
    for r in range(2, 16, 2):
        A(f"v_fmac_f32 v56, v{64+r}, v{96+r}")
        A(f"v_fmac_f32 v58, v{65+r}, v{97+r}")
    A("v_add_f32 v56, v56, v58")
    A("v_mov_b32 v57, s28")
    A("global_store_dwordx2 v53, v[56:57], s[56:57] sc1")
    stamp('t2pub')
    A("s_cmp_ge_u32 s2, 32")
    A("s_cbranch_scc1 L_fin")

    A(f"s_add_u32 s52, s26, {WS_PF}")
    A("s_addc_u32 s53, s27, 0")
    A("s_lshl_b32 s41, s2, 15")
    A("v_lshlrev_b32 v50, 3, v0")
    A("v_add_u32 v50, s41, v50")
    for k in range(1, 4):
        A(f"v_add_u32 v{50+k}, 8192, v{49+k}")
    A("v_add_u32 v50, 4096, v50")
    for k in range(1, 4):
        A(f"v_add_u32 v{50+k}, 4096, v{50+k}")
    A("s_lshl_b32 s41, s2, 5")
    A("v_and_b32 v54, 15, v0")
    A("v_lshlrev_b32 v54, 1, v54")
    A("v_add_u32 v54, s41, v54")
    A("global_load_ushort v55, v54, s[4:5]")
    A(f"s_mov_b32 s45, {spin}")
    g.lab("L_t3poll")
    for u in range(8):
        A(f"global_load_dwordx2 v[{64+2*u}:{65+2*u}], v{50+u//2}, s[56:57] offset:{(u%2)*4096-4096} sc1")
    for u in range(7):
        A(f"global_load_dwordx2 v[{80+2*u}:{81+2*u}], v{50+u//2}, s[52:53] offset:{(u%2)*4096-4096} sc1")
    A("s_waitcnt vmcnt(0)")
    A("v_mov_b32 v56, 0")
    for u in range(15):
        A(f"v_xor_b32 v57, s28, v{65+2*u}")
        A("v_or_b32 v56, v56, v57")
    A("v_cmp_ne_u32 vcc, 0, v56")
    A("s_cbranch_vccz L_t3got")
    A(f"s_sleep {sleep}")
    A("s_sub_u32 s45, s45, 1")
    A("s_cmp_lg_u32 s45, 0")
    A("s_cbranch_scc1 L_t3poll")
    g.lab("L_t3got")
    stamp('t3got')
    for u in range(1, 8):
        A(f"v_add_f32 v64, v64, v{64+2*u}")
    for u in range(1, 7):
        A(f"v_add_f32 v80, v80, v{80+2*u}")
    xlane("v_add_f32", "v64", "v57", 16)
    xlane("v_add_f32", "v80", "v57", 16)
    xlane("v_add_f32", "v64", "v57", 32)
    xlane("v_add_f32", "v80", "v57", 32)
    A("s_lshl_b32 s41, s29, 7")
    A("v_lshlrev_b32 v57, 2, v1")
    A("v_add_u32 v57, s41, v57")
    A("s_mov_b64 exec, 0xffff")
    A(f"ds_write_b32 v57, v64 offset:{L_R3}")
    A(f"ds_write_b32 v57, v80 offset:{L_R3+64}")
    A("s_mov_b64 exec, -1")
    A("s_waitcnt lgkmcnt(0)")
    A("s_barrier")
    A("s_cmp_eq_u32 s29, 0")
    A("s_cbranch_scc0 L_fin")
    A("v_and_b32 v57, 15, v1")
    A("v_lshlrev_b32 v57, 2, v57")
    for w in range(8):
        A(f"ds_read2_b32 v[{64+2*w}:{65+2*w}], v57 offset0:{L_R3//4 + 32*w - 640 + 640 if False else 0} offset1:0" if False else
          f"ds_read_b32 v{64+2*w}, v57 offset:{L_R3 + 128*w}")
        A(f"ds_read_b32 v{65+2*w}, v57 offset:{L_R3 + 128*w + 64}")
    A("s_waitcnt lgkmcnt(0)")
    for w in range(1, 8):
        A(f"v_add_f32 v64, v64, v{64+2*w}")
        A(f"v_add_f32 v65, v65, v{65+2*w}")
    rnd("v64", "v64"); rnd("v65", "v65")
    A(f"v_mul_f32 v66, {f32bits(-math.log2(math.e))}, v65")
    A("v_exp_f32 v66, v66")
    A("s_nop 0")
    A("v_add_f32 v66, 1.0, v66")
    A("v_rcp_f32 v66, v66")
    A("s_nop 0")
    A("v_mul_f32 v66, v66, v65")
    rnd("v66", "v66")
    A("v_mul_f32 v66, v66, v64")
    rnd("v66", "v66")
    A("v_lshlrev_b32 v55, 16, v55")
    A("v_add_f32 v66, v66, v55")
    A("v_cvt_pk_bf16_f32 v66, v66, v66")
    A("s_mov_b64 exec, 0xffff")
    A("global_store_short v54, v66, s[22:23]")
    A("s_cmp_eq_u32 s2, 0")
    A("s_cbranch_scc0 L_fin")
    A("s_mov_b64 exec, 1")
    A("v_mov_b32 v57, 0")
    A("v_mov_b32 v58, s28")
    A("global_store_dword v57, v58, s[26:27] sc1")
    g.lab("L_fin")
    if stamps:
        A("s_mov_b64 exec, -1")
        stamp('end')
        A("s_waitcnt lgkmcnt(0)")
        A("s_lshl_b32 s41, s2, 3")
        A("s_add_u32 s41, s41, s29")
        A("s_lshl_b32 s41, s41, 7")
        A(f"s_add_u32 s41, s41, {WS_ST}")
        A("v_mov_b32 v50, s41")
        A("s_mov_b64 exec, 1")
        for i in range(nst[0]):
            A(f"v_mov_b32 v51, s{70+2*i}")
            A(f"global_store_dword v50, v51, s[26:27] offset:{4*i}")
            A("s_nop 1")
    g.lab("L_end")
    A("s_endpgm")

    head = f"""; fused layernorm + GQA decode attention + projections + GEGLU FFN gate (generated by dev/gen.py)
; @launch grid=(256,1,1) block=(512,1,1) lds={LDS_BYTES}
.amdgcn_target "amdgcn-amd-amdhsa--gfx950"
.text
.globl {NAME}_kernel
.p2align 8
.type {NAME}_kernel,@function
{NAME}_kernel:
"""
    tail = f"""
.section .rodata,"a"
.p2align 6
.amdhsa_kernel {NAME}_kernel
  .amdhsa_next_free_vgpr 256
  .amdhsa_next_free_sgpr 102
  .amdhsa_accum_offset 256
  .amdhsa_group_segment_fixed_size 0
  .amdhsa_kernarg_size 96
  .amdhsa_user_sgpr_count 2
  .amdhsa_user_sgpr_kernarg_segment_ptr 1
  .amdhsa_system_sgpr_workgroup_id_x 1
.end_amdhsa_kernel
"""
    return head + g.text() + tail

if __name__ == '__main__':
    import argparse
    ap = argparse.ArgumentParser()
    ap.add_argument('-o', default='/dev/stdout')
    ap.add_argument('--stamps', action='store_true')
    ap.add_argument('--pol', default='nt')
    ap.add_argument('--wpol', default='nt')
    ap.add_argument('--vpol', default=None)
    a = ap.parse_args()
    open(a.o, 'w').write(gen(pol=a.pol, wpol=a.wpol, stamps=a.stamps, vpol=a.vpol))
```
